```python
import torch

def _softmax(x, axis=-1):
    return torch.softmax(x, dim=axis)

def _gelu(x):
    return torch.nn.functional.gelu(x, approximate='tanh')

def _silu(x):
    return torch.nn.functional.silu(x)

def _sigmoid(x):
    return torch.sigmoid(x)

def _layernorm(x, axis=-1, eps=1e-05):
    m = x.mean(dim=axis, keepdim=True)
    v = x.var(dim=axis, keepdim=True, unbiased=False)
    return (x - m) / torch.sqrt(v + eps)

def _scatter_add(tgt, idx, src, axis=0):
    return tgt.clone().index_add_(axis, idx, src)

def _segment_sum(src, seg, n):
    out = torch.zeros((n,) + src.shape[1:], dtype=src.dtype)
    return out.index_add_(0, seg, src)

def _pad(x, pw):
    flat = tuple((v for pair in reversed(pw) for v in pair))
    return torch.nn.functional.pad(x, flat)
kernel_name = 'standalone__dilated_atrous__vision'

def setup_inputs():

    _w = lambda a: (lambda t: t.to(torch.bfloat16) if t.is_floating_point() else t)(torch.as_tensor(a))
    H = W = 224
    C = 192
    k = 3
    return {'x': _w((lambda *s: torch.randn(*s, dtype=torch.bfloat16) * 0.05)(1, H, W, C)), 'w': _w((lambda *s: torch.randn(*s, dtype=torch.bfloat16) * 0.05)(k, k, C, C) * (1.0 / (k * C ** 0.5)))}

def reference(x, w):
    B, H, W, C = x.shape
    k = 3
    rate = 2
    pad = (k - 1) * rate // 2
    xp = _pad(x, ((0, 0), (pad, pad), (pad, pad), (0, 0)))
    out = torch.zeros_like(x)
    for i in range(k):
        for j in range(k):
            tap = xp[:, i * rate:i * rate + H, j * rate:j * rate + W, :].clone()
            out = out + torch.einsum('bhwc,co->bhwo', tap, w[i, j])
    return out
```

```python
import sys, argparse

KN = "standalone__dilated_atrous__vision_kernel"

class Asm:
    def __init__(self):
        self.lines = []
    def __call__(self, s):
        self.lines.append("    " + s)
    def label(self, s):
        self.lines.append(s + ":")
    def raw(self, s):
        self.lines.append(s)
    def text(self):
        return "\n".join(self.lines) + "\n"

def gen(opt):
    NB = 13
    ROWB = 18 * 128
    CH = 36 * 1024
    XB = 3 * CH
    RING = 4
    SLOT = 3072
    LDS = XB + 4 * RING * SLOT
    NX = 8
    D = opt.D
    S = opt.S
    NMAIN = 54 - S
    PI = [2, 3, 6, 7, 0, 1, 4, 5, 8, 9, 12, 13, 10, 11, 14, 15]

    a = Asm()
    a.raw(f"; @launch grid=(252,1,1) block=(256,1,1) lds={LDS}")
    a.raw('.amdgcn_target "amdgcn-amd-amdhsa--gfx950"')
    a.raw(".text")
    a.raw(f".globl {KN}")
    a.raw(".p2align 8")
    a.raw(f".type {KN},@function")
    a.raw(f"{KN}:")

    sX, sW, sO = 12, 16, 20
    sWave, sRing, sR0, sC0, sNR = 24, 25, 26, 27, 28
    sWoff, sL1, sL2, sOoff, sT0, sT1, sT2, sT3 = 29, 30, 31, 33, 34, 35, 36, 37
    vXD = 1
    vWD = 10
    vWR = 13
    vXR = 16
    vOP, vOQ, vOQ1 = 34, 35, 36
    vT = 40
    vWB = 64
    vDum = 88
    ACC = 100
    def acc(t, c): return ACC + 4 * (3 * t + c)
    aX = 0
    aS = 32

    stamps = opt.stamps
    nst = [0]
    def stamp():
        if not stamps: return
        i = nst[0]; nst[0] += 1
        b = 40 + 4 * i
        a(f"s_memtime s[{b}:{b+1}]")
        a(f"s_memrealtime s[{b+2}:{b+3}]")

    stamp()
    a("s_cmp_ge_u32 s2, 252")
    a("s_cbranch_scc1 L_end")
    a("s_load_dwordx4 s[4:7], s[0:1], 0")
    a("s_load_dwordx2 s[8:9], s[0:1], 16")
    if stamps: a("s_load_dwordx2 s[10:11], s[0:1], 32")
    a("s_and_b32 s34, s2, 7")
    a("s_lshr_b32 s35, s2, 3")
    a("s_lshl_b32 s36, s34, 5")
    a("s_max_u32 s37, s34, 4")
    a("s_sub_u32 s37, s37, 4")
    a("s_sub_u32 s36, s36, s37")
    a("s_add_u32 s36, s36, s35")
    a("s_mul_i32 s37, s36, 7282")
    a("s_lshr_b32 s37, s37, 16")
    a("s_mul_i32 s38, s37, 9")
    a("s_sub_u32 s38, s36, s38")
    a(f"s_mul_i32 s{sR0}, s38, 13")
    a("s_max_u32 s39, s38, 4")
    a("s_sub_u32 s39, s39, 4")
    a(f"s_sub_u32 s{sR0}, s{sR0}, s39")
    a("s_cmp_lt_u32 s38, 4")
    a(f"s_cselect_b32 s{sNR}, 13, 12")
    a("s_cselect_b64 vcc, 0, -1")
    a("s_mul_i32 s38, s37, 9363")
    a("s_lshr_b32 s38, s38, 16")
    a("s_mul_i32 s39, s38, 7")
    a("s_sub_u32 s39, s37, s39")
    a(f"s_lshl_b32 s{sC0}, s39, 4")
    a("s_lshr_b32 s39, s38, 1")
    a("s_and_b32 s38, s38, 1")
    a("s_mul_i32 s39, s39, 86016")
    a("s_mul_i32 s38, s38, 384")
    a("s_add_u32 s38, s38, s39")
    a("v_lshrrev_b32 v60, 6, v0")
    a("v_and_b32 v0, 63, v0")
    a("s_nop 0")
    a(f"v_readfirstlane_b32 s{sWave}, v60")
    a(f"s_mov_b32 s{sL1}, 128")
    a(f"s_mov_b32 s{sL2}, 256")
    a("s_nop 1")
    a(f"s_mul_i32 s{sRing}, s{sWave}, {RING*SLOT}")
    a(f"s_add_u32 s{sRing}, s{sRing}, {XB}")
    a("v_lshrrev_b32 v40, 3, v0")
    a("v_and_b32 v41, 7, v0")
    a(f"s_lshl_b32 s39, s{sWave}, 3")
    a("v_add_u32 v40, s39, v40")
    a(f"s_sub_u32 s{sT0}, s{sR0}, 1")
    a(f"s_sub_u32 s{sT1}, s{sC0}, 1")
    a(f"s_add_u32 s{sT2}, s{sNR}, 2")
    a("s_mov_b32 s3, 3641")
    a("v_mov_b32 v47, 0x80000000")
    for q in range(9):
        a(f"v_add_u32 v42, {32*q}, v40")
        a("v_mul_u32_u24 v43, s3, v42")
        a("v_lshrrev_b32 v43, 16, v43")
        a("v_mul_u32_u24 v44, 18, v43")
        a("v_sub_u32 v44, v42, v44")
        a("v_lshrrev_b32 v45, 1, v44")
        a("v_sub_u32 v45, v41, v45")
        a("v_and_b32 v45, 7, v45")
        a(f"v_cmp_gt_u32 s[90:91], s{sT2}, v43")
        a(f"v_add_u32 v43, s{sT0}, v43")
        a(f"v_add_u32 v44, s{sT1}, v44")
        a("s_movk_i32 s39, 112")
        a("v_cmp_gt_u32 s[92:93], s39, v43")
        a("v_cmp_gt_u32 s[94:95], s39, v44")
        a("s_mov_b32 s39, 172032")
        a("v_mul_lo_u32 v43, v43, s39")
        a("v_mul_u32_u24 v44, 768, v44")
        a("v_lshl_add_u32 v45, v45, 4, v44")
        a("v_add_u32 v45, v45, v43")
        a("s_and_b64 s[90:91], s[90:91], s[92:93]")
        a("s_and_b64 s[90:91], s[90:91], s[94:95]")
        a(f"v_cndmask_b32 v{vXD+q}, v47, v45, s[90:91]")
    a("v_lshrrev_b32 v42, 4, v0")
    a("v_bfe_u32 v43, v0, 2, 2")
    a("v_and_b32 v44, 3, v0")
    a("v_and_b32 v45, 1, v42")
    a("v_lshl_add_u32 v46, v42, 4, v43")
    a("v_mul_u32_u24 v46, 384, v46")
    a("v_lshlrev_b32 v48, 1, v45")
    a("v_xor_b32 v48, v48, v44")
    a("v_lshl_add_u32 v46, v48, 4, v46")
    a(f"s_lshl_b32 s39, s{sWave}, 6")
    a(f"v_add_u32 v{vWD}, s39, v46")
    a(f"v_add_u32 v{vWD+1}, {4*384}, v{vWD}")
    a("v_lshrrev_b32 v48, 5, v0")
    a("v_bfe_u32 v49, v0, 3, 2")
    a("v_bfe_u32 v50, v0, 1, 2")
    a("v_and_b32 v51, 1, v0")
    a("v_lshlrev_b32 v49, 4, v49")
    a("v_lshl_add_u32 v49, v48, 2, v49")
    a("v_add_u32 v49, v49, v50")
    a("v_mul_u32_u24 v49, 384, v49")
    a("v_lshl_add_u32 v49, v51, 4, v49")
    a(f"s_lshl_b32 s39, s{sWave}, 5")
    a("s_add_u32 s39, s39, 256")
    a(f"v_add_u32 v{vWD+2}, s39, v49")
    a("v_lshlrev_b32 v48, 8, v42")
    a("v_lshl_add_u32 v48, v43, 6, v48")
    a("v_lshl_add_u32 v48, v45, 5, v48")
    a("v_lshl_add_u32 v48, v44, 3, v48")
    a(f"v_add_u32 v{vWR}, s{sRing}, v48")
    a("v_xor_b32 v48, 32, v48")
    a(f"v_add_u32 v{vWR+1}, s{sRing}, v48")
    a("v_lshlrev_b32 v48, 3, v0")
    a(f"v_add_u32 v{vWR+2}, s{sRing}, v48")
    a("v_and_b32 v48, 15, v0")
    lo = sum(PI[i] << (4 * i) for i in range(8)); hi = sum(PI[8 + i] << (4 * i) for i in range(8))
    a(f"s_mov_b32 s98, {lo:#x}")
    a(f"s_mov_b32 s99, {hi:#x}")
    a("v_lshlrev_b32 v49, 2, v48")
    a("v_lshrrev_b64 v[50:51], v49, s[98:99]")
    a("v_and_b32 v50, 15, v50")
    for j in range(3):
        a(f"v_add_u32 v49, {j}, v50")
        a("v_lshrrev_b32 v51, 1, v49")
        a("v_lshl_add_u32 v51, v42, 1, v51")
        for h in range(2):
            a(f"v_add_u32 v52, {h}, v51")
            a("v_and_b32 v52, 7, v52")
            a("v_lshlrev_b32 v52, 4, v52")
            a("v_lshl_add_u32 v52, v49, 7, v52")
            for lc in range(3):
                if lc == 0:
                    a(f"v_mov_b32 v{vXR + 6*lc + 2*j + h}, v52")
                else:
                    a(f"v_add_u32 v{vXR + 6*lc + 2*j + h}, {lc*CH}, v52")
    a("v_mul_u32_u24 v49, 768, v50")
    a(f"s_lshl_b32 s39, s{sWave}, 6")
    a("v_lshl_add_u32 v51, v42, 4, v49")
    a(f"v_add_u32 v{vOP}, s39, v51")
    a(f"s_lshl_b32 s39, s{sWave}, 5")
    a("s_add_u32 s39, s39, 256")
    a("v_lshrrev_b32 v51, 1, v42")
    a("v_lshl_add_u32 v51, v51, 4, v49")
    a("s_mov_b32 s98, 172032")
    a("v_mul_lo_u32 v52, v45, s98")
    a("v_add_u32 v51, v51, v52")
    a(f"v_add_u32 v{vOQ}, s39, v51")
    a("v_lshl_add_u32 v51, v42, 3, v49")
    a(f"v_add_u32 v{vOQ1}, s39, v51")
    a("s_lshr_b32 s39, s2, 3")
    a("s_cmp_eq_u32 s39, 31")
    a("s_cselect_b32 s39, 0, s39")
    a("s_mul_i32 s39, s39, 21504")
    a(f"s_mul_i32 s98, s{sWave}, 5376")
    a("s_add_u32 s39, s39, s98")
    a("v_lshlrev_b32 v53, 4, v0")
    a("v_add_u32 v53, s39, v53")
    a("s_waitcnt lgkmcnt(0)")
    a(f"s_add_u32 s{sX}, s4, s38")
    a(f"s_addc_u32 s{sX+1}, s5, 0")
    a(f"s_sub_u32 s{sX+2}, 19267584, s38")
    a(f"s_mov_b32 s{sX+3}, 0x20000")
    a(f"s_mov_b32 s{sW}, s6")
    a(f"s_mov_b32 s{sW+1}, s7")
    a(f"s_mov_b32 s{sW+2}, 663552")
    a(f"s_mov_b32 s{sW+3}, 0x20000")
    a(f"s_mul_i32 s39, s{sR0}, 172032")
    a(f"s_mul_i32 s98, s{sC0}, 768")
    a("s_add_u32 s39, s39, s98")
    a("s_add_u32 s39, s39, s38")
    a(f"s_add_u32 s{sO}, s8, s39")
    a(f"s_addc_u32 s{sO+1}, s9, 0")
    a(f"s_sub_u32 s{sO+2}, 19267584, s39")
    a(f"s_mov_b32 s{sO+3}, 0x20000")

    vmq = []
    lgq = []
    def vm_issue(tag): vmq.append(tag)
    def lg_issue(tag): lgq.append(tag)
    def wait_vm(tags):
        idx = [i for i, t in enumerate(vmq) if t in tags]
        if not idx: return
        last = max(idx)
        n = len(vmq) - 1 - last
        assert n <= 63
        a(f"s_waitcnt vmcnt({n})")
        del vmq[:last + 1]
    def wait_lg(tags):
        idx = [i for i, t in enumerate(lgq) if t in tags]
        if not idx: return
        last = max(idx)
        n = len(lgq) - 1 - last
        if n > 15:
            n = 15
            last = len(lgq) - 1 - 15
        a(f"s_waitcnt lgkmcnt({n})")
        del lgq[:last + 1]

    def kinfo(k):
        lc = k // 18; tap = (k % 18) // 2; h = k % 2
        return lc, tap // 3, tap % 3, h
    def wsoff(k):
        lc, i, j, h = kinfo(k)
        return (3 * i + j) * 73728 + (64 * lc + 8 * h) * 384

    stream = []
    rstep = {}
    nst_ = S
    stash_steps = []
    if nst_:
        for e in range(nst_):
            stash_steps.append(min(NMAIN - 1, int((e + 1) * NMAIN / nst_) - 1))
    e = 0
    for step in range(-1, NMAIN):
        if step + 1 < NMAIN:
            stream.append(step + 1); rstep[step + 1] = step
        while e < nst_ and stash_steps[e] == step:
            stream.append(NMAIN + e); rstep[NMAIN + e] = step; e += 1
    assert len(stream) == 54, len(stream)
    spos = {k: n for n, k in enumerate(stream)}

    def wset_regs(k):
        if k < NMAIN:
            return ("v", vWB + 12 * (k % 2))
        return ("a", aS + 12 * (k - NMAIN))
    def wreg(k, c, half=None):
        p, b = wset_regs(k)
        b += 4 * c
        if half is None: return f"{p}[{b}:{b+3}]"
        return f"{p}[{b+2*half}:{b+2*half+1}]"

    def dma_w_ops(k):
        n = spos[k]; slot = n % RING
        ops = []
        for part in range(3):
            ins = []
            if part == 0:
                ins.append(("s", f"s_mov_b32 s{sWoff}, {wsoff(k)}"))
            ins.append(("s", f"s_add_u32 m0, s{sRing}, {slot*SLOT + part*1024}"))
            ins.append(("dma", f"buffer_load_dwordx4 v{vWD+part}, s[{sW}:{sW+3}], s{sWoff} offen lds", ("w", k)))
            ops.append(ins)
        return ops
    def dma_x_op(lc, q):
        so = "0" if lc == 0 else f"s{sL1 if lc==1 else sL2}"
        return [("s", f"s_add_u32 m0, s{sT3}, {lc*CH + q*4096}"),
                ("dma", f"buffer_load_dwordx4 v{vXD+q}, s[{sX}:{sX+3}], {so} offen lds", ("x", lc))]
    def wread_ops(k):
        n = spos[k]; slot = n % RING
        ops = []
        for hf in range(2):
            ops.append(f"ds_read_b64_tr_b16 {wreg(k,0,hf)}, v{vWR} offset:{slot*SLOT + hf*1024}")
            ops.append(f"ds_read_b64_tr_b16 {wreg(k,1,hf)}, v{vWR+1} offset:{slot*SLOT + hf*1024}")
            ops.append(f"ds_read_b64_tr_b16 {wreg(k,2,hf)}, v{vWR+2} offset:{slot*SLOT + 2048 + hf*512}")
        return ops

    groups = [(t, k) for k in range(NMAIN) for t in range(NB)] + [(t, k) for t in range(NB) for k in range(NMAIN, 54)]
    NG = len(groups)
    def xread(gi):
        t, k = groups[gi]
        lc, i, j, h = kinfo(k)
        r = aX + 4 * (gi % NX)
        return f"ds_read_b128 a[{r}:{r+3}], v{vXR + 6*lc + 2*j + h} offset:{(t+i)*ROWB}"

    def emit_ins(ins):
        for x in ins:
            if x[0] == "s": a(x[1])
            elif x[0] == "dma":
                a(x[1]); vm_issue(x[2])

    a(f"s_lshl_b32 s{sT3}, s{sWave}, 10")
    a("s_nop 0")
    def emit_dma_group(ins):
        for x in ins:
            if x[0] == "s": a(x[1])
            else:
                a("s_nop 0"); a(x[1]); vm_issue(x[2])
    for op in dma_w_ops(stream[0]): emit_dma_group(op)
    for q in range(9): emit_dma_group(dma_x_op(0, q))
    for n in range(1, RING):
        for op in dma_w_ops(stream[n]): emit_dma_group(op)
    if opt.warm:
        for q in range(6):
            a(f"buffer_load_dwordx4 v[{vDum}:{vDum+3}], v53, s[{sW}:{sW+3}], 0 offen offset:{0}" if q == 0 else
              f"buffer_load_dwordx4 v[{vDum}:{vDum+3}], v53, s[{sW}:{sW+3}], 0 offen")
            vm_issue(("warm", q))
            if q < 5: a("v_add_u32 v53, 1024, v53")
    stamp()
    wait_vm([("x", 0), ("w", stream[0])])
    a("s_barrier")
    stamp()
    for op in wread_ops(stream[0]):
        a(op); lg_issue(("w", stream[0]))
    for gi in range(D):
        a(xread(gi)); lg_issue(("x", gi))

    side = {gi: [] for gi in range(NG)}
    xsched1 = list(range(0, 16, 2))[:9] if False else [0,1,3,5,7,9,11,13,15]
    xsched2 = [17,18,20,22,24,26,28,30,32] if NMAIN >= 34 else None
    if xsched2 is None:
        xsched2 = [min(NMAIN-2, 17 + (q * (NMAIN - 19)) // 9) for q in range(9)]
    next_dma = RING
    reads_done_step = {}
    for step in range(NMAIN):
        g0 = step * NB
        els = [k for k in stream if rstep[k] == step]
        pos = 0
        nreads = 6 * len(els)
        start = opt.wstart if len(els) == 1 else 0
        per = 1
        gidx = start
        for k in els:
            ops = wread_ops(k)
            for n_, op in enumerate(ops):
                side[g0 + gidx].append(("wread", k, op, n_ == 0))
                gidx += 1
        assert gidx <= NB, (step, gidx)
        gd = 0
        while next_dma < len(stream) and rstep[stream[next_dma - RING]] <= step - 1:
            for op in dma_w_ops(stream[next_dma]):
                side[g0 + gd].append(("dma", stream[next_dma], op, stream[next_dma - RING]))
                gd += 1
            next_dma += 1
        assert gd <= NB
        for q, st in enumerate(xsched1):
            if st == step: side[g0 + min(gd, NB - 2)].append(("xdma", 1, q))
        for q, st in enumerate(xsched2):
            if st == step: side[g0 + min(gd, NB - 2)].append(("xdma", 2, q))
    assert next_dma == len(stream), next_dma

    def epi_ops(t):
        T = vT + 8 * (t % 2)
        ops = []
        A0, A1, A2 = acc(t, 0), acc(t, 1), acc(t, 2)
        QT = vT + 16 + 4 * ((t // 2) % 2)
        l1 = [f"v_cvt_pk_bf16_f32 v{T}, v{A0}, v{A0+1}", f"v_cvt_pk_bf16_f32 v{T+1}, v{A0+2}, v{A0+3}",
              f"v_cvt_pk_bf16_f32 v{T+2}, v{A1}, v{A1+1}", f"v_cvt_pk_bf16_f32 v{T+3}, v{A1+2}, v{A1+3}"]
        qo = 0 if t % 2 == 0 else 2
        l2 = [f"v_cvt_pk_bf16_f32 v{QT+qo}, v{A2}, v{A2+1}", f"v_cvt_pk_bf16_f32 v{QT+qo+1}, v{A2+2}, v{A2+3}",
              f"v_permlane32_swap_b32 v{T}, v{T+2}", f"v_permlane32_swap_b32 v{T+1}, v{T+3}"]
        l3 = [f"s_mov_b32 s{sOoff}, {t*172032}", "NOP1",
              f"v_permlane16_swap_b32 v{T}, v{T+2}", f"v_permlane16_swap_b32 v{T+1}, v{T+3}"]
        l4 = [f"STORE buffer_store_dwordx4 v[{T}:{T+3}], v{vOP}, s[{sO}:{sO+3}], s{sOoff} offen{opt.stmod}"]
        ops = [l1, l2, l3, l4]
        if t % 2 == 1:
            l5 = [f"s_mov_b32 s{sOoff}, {(t-1)*172032}",
                  f"v_permlane16_swap_b32 v{QT}, v{QT+2}", f"v_permlane16_swap_b32 v{QT+1}, v{QT+3}"]
            l6 = [f"STORE buffer_store_dwordx4 v[{QT}:{QT+3}], v{vOQ}, s[{sO}:{sO+3}], s{sOoff} offen{opt.stmod}"]
            ops += [l5, l6]
        elif t == NB - 1:
            l6 = [f"STORE buffer_store_dwordx2 v[{QT}:{QT+1}], v{vOQ1}, s[{sO}:{sO+3}], s{sOoff} offen{opt.stmod}"]
            ops += [l6]
        return ops
    def emit_epi(lst):
        for x in lst:
            if x == "NOP1": a("s_nop 0")
            elif x.startswith("STORE "):
                a(x[6:]); vm_issue(("st",))
            else: a(x)

    tail0 = NMAIN * NB
    if S:
        for t in range(NB - 1):
            gend = tail0 + (t + 1) * S - 1
            ops = epi_ops(t)
            for n_, l in enumerate(ops):
                side[gend + 2 + n_].append(("epi", l, t))

    first_lc_read = {}
    for gi in range(NG):
        t, k = groups[gi]
        lc = kinfo(k)[0]
        first_lc_read.setdefault(lc, gi)
    if S == 0: pass
    written = set()
    def mfma(gi, c):
        t, k = groups[gi]
        r = aX + 4 * (gi % NX)
        d = acc(t, c)
        src = f"v[{d}:{d+3}]" if (t, c) in written else "0"
        written.add((t, c))
        a(f"v_mfma_f32_16x16x32_bf16 v[{d}:{d+3}], {wreg(k, c)}, a[{r}:{r+3}], {src}")

    for gi in range(NG):
        t, k = groups[gi]
        intail = gi >= tail0
        if intail and t == NB - 1 and k == NMAIN:
            a("s_cbranch_vccnz L_tail12")
        need = [("x", gi)]
        if (not intail and t == 0) or (intail and t == 0):
            need.append(("w", k))
        wait_lg(need)
        skip = (t == NB - 1 and not intail)
        sops = list(side[gi])
        nx = gi + D
        def do_xread():
            if nx < NG:
                lcn = kinfo(groups[nx][1])[0]
                if first_lc_read[lcn] == nx and lcn > 0:
                    wait_vm([("x", lcn)])
                    a("s_barrier")
                a(xread(nx)); lg_issue(("x", nx))
        def do_side(s_):
            kind = s_[0]
            if kind == "wread":
                _, kk, op, first = s_
                if first: wait_vm([("w", kk)])
                a(op); lg_issue(("w", kk))
            elif kind == "dma":
                _, kk, op, prev = s_
                if any(tg == ("w", prev) for tg in lgq):
                    wait_lg([("w", prev)])
                m0 = [x for x in op if x[0] == "s"]; dm = [x for x in op if x[0] == "dma"]
                for x in m0: a(x[1])
                return dm
            elif kind == "xdma":
                op = dma_x_op(s_[1], s_[2])
                a(op[0][1])
                return [op[1]]
            elif kind == "epi":
                emit_epi(s_[1])
            return []
        if skip:
            a(f"s_cbranch_vccnz L_skip{gi}")
            for c in range(3): mfma(gi, c)
            a.label(f"L_skip{gi}")
            do_xread()
            for s_ in sops:
                dm = do_side(s_)
                for x in dm:
                    a("s_nop 0"); a(x[1]); vm_issue(x[2])
        else:
            mfma(gi, 0)
            do_xread()
            pend = []
            rest = sops
            m0ops = [s_ for s_ in rest if s_[0] in ("dma", "xdma")]
            oth = [s_ for s_ in rest if s_[0] not in ("dma", "xdma")]
            if m0ops:
                pend = do_side(m0ops[0])
            mfma(gi, 1)
            for x in pend:
                a(x[1]); vm_issue(x[2])
            pend = []
            if len(m0ops) > 1:
                pend = do_side(m0ops[1])
            for s_ in oth: do_side(s_)
            mfma(gi, 2)
            for x in pend:
                a(x[1]); vm_issue(x[2])
            for s_ in m0ops[2:]:
                dm = do_side(s_)
                for x in dm:
                    a("s_nop 0"); a(x[1]); vm_issue(x[2])
        if gi == tail0 - 1: stamp()
        if not intail and t == NB - 1 and k in (0, 17): stamp()

    if S:
        stamp()
        a("s_nop 7"); a("s_nop 1")
        for l in epi_ops(NB - 1):
            emit_epi(l); a("s_nop 1")
        a("s_branch L_fin")
        a.label("L_tail12")
        a("s_nop 7"); a("s_nop 1")
        for l in epi_ops(NB - 2):
            emit_epi(l); a("s_nop 1")
        a.label("L_fin")
    else:
        stamp()
        a("s_nop 7"); a("s_nop 1")
        for t in range(NB):
            if t == NB - 1: a("s_cbranch_vccnz L_fin")
            for l in epi_ops(t):
                emit_epi(l); a("s_nop 1")
        a.label("L_fin")
    if stamps:
        a("s_waitcnt vmcnt(0)")
        stamp()
        a("s_waitcnt lgkmcnt(0)")
        a("v_cmp_eq_u32 vcc, 0, v0")
        a(f"s_cmp_eq_u32 s{sWave}, 0")
        a("s_cbranch_scc0 L_end")
        a("s_and_saveexec_b64 s[96:97], vcc")
        a("s_cbranch_execz L_end")
        a("s_lshl_b32 s3, s2, 8")
        a("v_mov_b32 v1, s3")
        for i in range(nst[0]):
            b = 40 + 4 * i
            a(f"v_mov_b32 v2, s{b}"); a(f"v_mov_b32 v3, s{b+1}"); a(f"v_mov_b32 v4, s{b+2}"); a(f"v_mov_b32 v5, s{b+3}")
            a(f"global_store_dwordx4 v1, v[2:5], s[10:11] offset:{16*i}")
            a("s_nop 1")
        print("stamps:", nst[0], file=sys.stderr)
    a.label("L_end")
    a("s_endpgm")
    a.raw('.section .rodata,"a"')
    a.raw(".p2align 6")
    a.raw(f".amdhsa_kernel {KN}")
    a.raw("  .amdhsa_next_free_vgpr 512")
    a.raw("  .amdhsa_next_free_sgpr 102")
    a.raw("  .amdhsa_accum_offset 256")
    a.raw("  .amdhsa_group_segment_fixed_size 0")
    a.raw("  .amdhsa_kernarg_size 40")
    a.raw("  .amdhsa_user_sgpr_count 2")
    a.raw("  .amdhsa_user_sgpr_kernarg_segment_ptr 1")
    a.raw("  .amdhsa_system_sgpr_workgroup_id_x 1")
    a.raw(".end_amdhsa_kernel")
    return a.text()

if __name__ == "__main__":
    ap = argparse.ArgumentParser()
    ap.add_argument("-o", default="standalone__dilated_atrous__vision.s")
    ap.add_argument("--D", type=int, default=5)
    ap.add_argument("--S", type=int, default=18)
    ap.add_argument("--warm", type=int, default=1)
    ap.add_argument("--wstart", type=int, default=6)
    ap.add_argument("--stamps", type=int, default=0)
    ap.add_argument("--stmod", default="")
    opt = ap.parse_args()
    open(opt.o, "w").write(gen(opt))
```
